```python
import torch

def _softmax(x, axis=-1):
    return torch.softmax(x, dim=axis)
def _gelu(x):
    return torch.nn.functional.gelu(x, approximate="tanh")
def _silu(x):
    return torch.nn.functional.silu(x)
def _sigmoid(x):
    return torch.sigmoid(x)
def _layernorm(x, axis=-1, eps=1e-5):
    m = x.mean(dim=axis, keepdim=True)
    v = x.var(dim=axis, keepdim=True, unbiased=False)
    return (x - m) / torch.sqrt(v + eps)
def _scatter_add(tgt, idx, src, axis=0):
    return tgt.clone().index_add_(axis, idx, src)
def _segment_sum(src, seg, n):
    out = torch.zeros((n,) + src.shape[1:], dtype=src.dtype)
    return out.index_add_(0, seg, src)
def _pad(x, pw):
    flat = tuple(v for pair in reversed(pw) for v in pair)
    return torch.nn.functional.pad(x, flat)

kernel_name = 'concat_heads__mha_block_cached__mha_block_cached__near_ridge'

def setup_inputs():

    _w = (lambda a: (lambda t: t.to(torch.bfloat16) if t.is_floating_point() else t)(torch.as_tensor(a)))
    def _A_setup():
        B, Sq, D = 8, 192, 512
        H, Sk, Dh = 32, 512, 128
        return {
            "x": _w((lambda *s: torch.randn(*s, dtype=torch.bfloat16) * 0.8)(B, Sq, D)),
            "k_cache": _w((lambda *s: torch.randn(*s, dtype=torch.bfloat16) * 0.8)(B, H, Sk, Dh)),
            "v_cache": _w((lambda *s: torch.randn(*s, dtype=torch.bfloat16) * 0.05)(B, H, Sk, Dh)),
            "wq": _w((lambda *s: torch.randn(*s, dtype=torch.bfloat16) * 0.8)(D, H * Dh) * (D ** -0.5)),
            "wo": _w((lambda *s: torch.randn(*s, dtype=torch.bfloat16) * 0.05)(H * Dh, D) * ((H * Dh) ** -0.5)),
        }
    _A_in = _A_setup()

    def _B_setup():
        B, Sq, D = 8, 192, 512
        H, Sk, Dh = 32, 512, 128
        return {
            "x": _w((lambda *s: torch.randn(*s, dtype=torch.bfloat16) * 0.8)(B, Sq, D)),
            "k_cache": _w((lambda *s: torch.randn(*s, dtype=torch.bfloat16) * 0.8)(B, H, Sk, Dh)),
            "v_cache": _w((lambda *s: torch.randn(*s, dtype=torch.bfloat16) * 0.05)(B, H, Sk, Dh)),
            "wq": _w((lambda *s: torch.randn(*s, dtype=torch.bfloat16) * 0.8)(D, H * Dh) * (D ** -0.5)),
            "wo": _w((lambda *s: torch.randn(*s, dtype=torch.bfloat16) * 0.05)(H * Dh, D) * ((H * Dh) ** -0.5)),
        }
    _B_in = _B_setup()

    return {
        "A_x": _A_in["x"],
        "A_k_cache": _A_in["k_cache"],
        "A_v_cache": _A_in["v_cache"],
        "A_wq": _A_in["wq"],
        "A_wo": _A_in["wo"],
        "B_x": _B_in["x"],
        "B_k_cache": _B_in["k_cache"],
        "B_v_cache": _B_in["v_cache"],
        "B_wq": _B_in["wq"],
        "B_wo": _B_in["wo"],
    }

def reference(A_x, A_k_cache, A_v_cache, A_wq, A_wo, B_x, B_k_cache, B_v_cache, B_wq, B_wo):
    def _A_ref(x, k_cache, v_cache, wq, wo):
        B, Sq, D = x.shape
        H, Dh = 32, 128
        q = (lambda x, *d: x.permute(*d))((x @ wq).reshape(B, Sq, H, Dh), 0, 2, 1, 3)
        scores = torch.einsum("bhqd,bhkd->bhqk", q, k_cache) * (Dh ** -0.5)
        p = _softmax(scores, axis=-1)
        o = torch.einsum("bhqk,bhkd->bhqd", p, v_cache)
        return (lambda x, *d: x.permute(*d))(o, 0, 2, 1, 3).reshape(B, Sq, H * Dh) @ wo

    def _B_ref(x, k_cache, v_cache, wq, wo):
        B, Sq, D = x.shape
        H, Dh = 32, 128
        q = (lambda x, *d: x.permute(*d))((x @ wq).reshape(B, Sq, H, Dh), 0, 2, 1, 3)
        scores = torch.einsum("bhqd,bhkd->bhqk", q, k_cache) * (Dh ** -0.5)
        p = _softmax(scores, axis=-1)
        o = torch.einsum("bhqk,bhkd->bhqd", p, v_cache)
        return (lambda x, *d: x.permute(*d))(o, 0, 2, 1, 3).reshape(B, Sq, H * Dh) @ wo

    a = _A_ref(A_x, A_k_cache, A_v_cache, A_wq, A_wo)
    b = _B_ref(B_x, B_k_cache, B_v_cache, B_wq, B_wo)
    return torch.concatenate([a, b], axis=-1)
```

```python
import re
TRANS = ("v_exp_f32", "v_log_f32", "v_rcp_f32", "v_rsq_f32", "v_sqrt_f32")
def regs(tok):
    tok = tok.strip()
    m = re.fullmatch(r"-?(?:abs\()?([vas])\[(\d+):(\d+)\]\)?", tok)
    if m: return [(m.group(1), i) for i in range(int(m.group(2)), int(m.group(3)) + 1)]
    m = re.fullmatch(r"-?(?:abs\()?([vas])(\d+)\)?", tok)
    if m: return [(m.group(1), int(m.group(2)))]
    if tok == "vcc": return [("s", "vcc")]
    if tok == "m0": return [("s", "m0")]
    if tok == "exec": return [("s", "exec")]
    return []
class Ins:
    def __init__(self, text):
        self.text = text
        t = text.split(";")[0].strip()
        parts = t.split(None, 1)
        self.op = parts[0] if parts else ""
        ops = [o.strip() for o in parts[1].split(",")] if len(parts) > 1 else []
        ops = [o.split()[0] if o else o for o in ops]
        self.ops = ops
        op = self.op
        self.is_mfma = op.startswith("v_mfma")
        self.is_valu = op.startswith("v_") and not self.is_mfma
        self.is_trans = any(op.startswith(x) for x in TRANS)
        self.is_perm = op.startswith("v_permlane")
        self.is_vmem = op.startswith(("buffer_", "global_"))
        self.is_ds = op.startswith("ds_")
        self.is_salu = op.startswith("s_")
        self.dst = []; self.src = []
        if self.is_mfma:
            self.dst = regs(ops[0]); self.srcab = regs(ops[1]) + regs(ops[2]); self.srcc = regs(ops[3]); self.src = self.srcab + self.srcc
        elif self.is_valu:
            if op.startswith("v_cmp"):
                self.dst = regs(ops[0]); self.src = sum((regs(o) for o in ops[1:]), [])
            elif op.startswith("v_readfirstlane") or op.startswith("v_readlane"):
                self.dst = regs(ops[0]); self.src = sum((regs(o) for o in ops[1:]), [])
            elif self.is_perm:
                self.dst = regs(ops[0]) + regs(ops[1]); self.src = list(self.dst)
            else:
                self.dst = regs(ops[0]); self.src = sum((regs(o) for o in ops[1:]), [])
                if op.startswith(("v_fmac", "v_pk_fmac")): self.src += self.dst
                if op.startswith("v_cndmask") and len(ops) == 3: self.src += [("s", "vcc")]
        elif self.is_ds:
            if op.startswith(("ds_read", "ds_bpermute", "ds_swizzle")):
                self.dst = regs(ops[0]); self.src = sum((regs(o) for o in ops[1:]), [])
            else:
                self.src = sum((regs(o) for o in ops), [])
        elif self.is_vmem:
            if "store" in op: self.src = sum((regs(o) for o in ops), [])
            elif " lds" in t: self.src = sum((regs(o) for o in ops), []) + [("s", "m0")]
            else:
                self.dst = regs(ops[0]); self.src = sum((regs(o) for o in ops[1:]), [])
        elif self.is_salu:
            if op.startswith(("s_cmp", "s_cbranch", "s_branch", "s_waitcnt", "s_barrier", "s_nop", "s_setprio", "s_endpgm", "s_sleep")):
                self.src = sum((regs(o) for o in ops), [])
            else:
                self.dst = regs(ops[0]) if ops else []; self.src = sum((regs(o) for o in ops[1:]), [])
        self.states = 1
        if op == "s_nop": self.states = int(ops[0]) + 1
def need(p, c):
    n = 0
    pd = set(p.dst);
    if p.is_valu:
        vd = {r for r in pd if r[0] in "va"}; sd = {r for r in pd if r[0] == "s"}
        if c.is_mfma and vd & set(c.src): n = max(n, 2)
        if c.is_perm and vd & set(c.src): n = max(n, 2)
        if c.op.startswith(("v_readfirstlane", "v_readlane")) and vd & set(c.src): n = max(n, 1)
        if p.is_trans and c.is_valu and not c.is_trans and vd & set(c.src): n = max(n, 1)
        if p.is_trans and c.is_mfma and vd & set(c.src): n = max(n, 2)
        if sd and c.is_vmem and sd & set(c.src): n = max(n, 5)
        if sd and c.is_valu and sd & set(c.src): n = max(n, 2)
        if sd and c.is_salu and sd & set(c.src): n = max(n, 1)
        if "dpp" in c.text and vd & set(c.src): n = max(n, 2)
    if p.is_mfma:
        big = "32x32" in p.op
        if c.is_mfma:
            if pd & set(c.srcab): n = max(n, 12 if big else 8)
            if pd & set(c.srcc):
                if set(c.srcc) != pd: n = max(n, 10 if big else 6)
            if pd & set(c.dst) and set(c.srcc) != pd and not (pd & set(c.srcc)): n = max(n, 10 if big else 6)
        elif (c.is_valu or c.is_vmem or c.is_ds) and (pd & (set(c.src) | set(c.dst))): n = max(n, 12 if big else 8)
        if c.is_valu and set(p.srcc) & set(c.dst): n = max(n, 7 if big else 3)
    if p.is_salu and ("s", "m0") in pd and ("s", "m0") in c.src and c.is_vmem: n = max(n, 1)
    if p.is_vmem and "store" in p.op and ("x4" in p.op or "x3" in p.op) and c.is_valu:
        data = regs(p.ops[0]) if p.op.startswith("buffer_") else regs(p.ops[1])
        if set(data) & set(c.dst): n = max(n, 2)
    return n
class Asm:
    def __init__(self):
        self.lines = []; self.hist = []
    def raw(self, s):
        self.lines.append(s)
    def label(self, l, pad=True):
        if pad: self.flush()
        self.lines.append(l + ":")
    def flush(self):
        if any(i.is_mfma for i in self.hist[-12:]) :
            self.need_pad(8)
        elif self.hist: self.need_pad(2)
        self.hist = []
    def need_pad(self, n):
        d = 0
        for i in reversed(self.hist):
            if i.is_mfma or (i.is_valu and n <= 2): break
            d += i.states
            if d >= n: return
        else:
            return
        self.nop(n - d)
    def nop(self, n):
        while n > 0:
            k = min(n, 16); self.lines.append(f"s_nop {k-1}"); self.hist.append(Ins(f"s_nop {k-1}")); n -= k
    def __call__(self, text):
        for t in text.strip().split("\n"):
            t = t.strip()
            if not t or t.startswith(";"): continue
            if t.endswith(":"): self.label(t[:-1]); continue
            c = Ins(t)
            d = 0; req = 0
            for p in reversed(self.hist[-24:]):
                n = need(p, c)
                if n - d > req: req = n - d
                d += p.states
                if d >= 20: break
            if req > 0: self.nop(req)
            self.lines.append(t); self.hist.append(c)
            if c.op.startswith(("s_cbranch", "s_branch")):
                pass
    def text(self): return "\n".join(self.lines) + "\n"
def vr(b, n=1): return f"v{b}" if n == 1 else f"v[{b}:{b+n-1}]"
def sr(b, n=1): return f"s{b}" if n == 1 else f"s[{b}:{b+n-1}]"
def kernel(label, body, vgpr=256, sgpr=102, accum=None):
    accum = accum or ((vgpr + 3) // 4 * 4)
    return f""".text
.globl {label}
.p2align 8
.type {label},@function
{label}:
{body}
s_endpgm
.section .rodata,"a"
.p2align 6
.amdhsa_kernel {label}
  .amdhsa_next_free_vgpr {vgpr}
  .amdhsa_next_free_sgpr {sgpr}
  .amdhsa_accum_offset {accum}
  .amdhsa_group_segment_fixed_size 0
  .amdhsa_kernarg_size 104
  .amdhsa_user_sgpr_count 2
  .amdhsa_user_sgpr_kernarg_segment_ptr 1
  .amdhsa_system_sgpr_workgroup_id_x 1
.end_amdhsa_kernel
"""
```

```python
from asmlib import *
ACC=0; QF=96; S=144; P=168; FR=180; NEGM=212; L=224; TS=227
VK=230; VV=231; DK=235; DV=236; VW=237; VX=241; DW=242; DX=243; T0=244
def acc(t,qt): return ACC+(t*3+qt)*4
def qf(s,qt): return QF+(s*3+qt)*4
def st(kt,qt): return S+(kt*3+qt)*4
KSL=8704; VSL=9216; ROLE_SZ=KSL+VSL; KVS=2*ROLE_SZ
KV_TOP=128000; KV_LOW=KV_TOP-3*KVS
QS=12288+2*8704
LDS_BYTES=163840
C_SCALE=0x3e02a9b0
import struct, math
def f2u(x): return struct.unpack("<I", struct.pack("<f", x))[0]
C_SCALE=f2u(math.log2(math.e)/math.sqrt(128.0))
THR=f2u(65536.0)
NT=" nt"
DBG=False
QBAR=0; WOPF=False; QROT=None; STAG=True; QPRIO=True; LATE_T=9; PFQ=False; NT_WQ=False; OST=""
def ts(a,i):
    if not DBG or ((QFINE or SFINE) and a.tag=='k1'): return
    a(f"s_memrealtime s[{72+2*i}:{73+2*i}]"); a("s_waitcnt lgkmcnt(0)")
def ts_dump(a,n,widx="s28",base=0):
    if not DBG: return
    a("s_load_dwordx2 s[52:53], s[0:1], 88"); a("s_waitcnt lgkmcnt(0)")
    a(f"s_lshl_b32 s54, s2, 3"); a(f"s_add_u32 s54, s54, {widx}"); a("s_lshl_b32 s54, s54, 6"); a(f"s_add_u32 s54, s54, {base}")
    a("s_add_u32 s52, s52, s54"); a("s_addc_u32 s53, s53, 0")
    a("v_mov_b32 v2, 0")
    for i in range(n):
        a(f"v_mov_b32 v3, s{72+2*i}")
        a(f"global_store_dword v2, v3, s[52:53] offset:{4*i}")
        a("s_nop 1")
QFINE=False; NOQDMA=False; SFINE=False
def tsf(a,i):
    if not SFINE: return
    a(f"s_memrealtime s[{72+2*i}:{73+2*i}]"); a("s_waitcnt lgkmcnt(0)")
def tq(a,i):
    if not QFINE: return
    a("s_cmp_eq_u32 s31, 8"); a(f"s_cbranch_scc0 TQ{a.uid}"); a(f"s_memtime s[{72+2*i}:{73+2*i}]"); a("s_waitcnt lgkmcnt(0)"); a.lines.append(f"TQ{a.uid}:"); a.uid+=1
class LQ:
    def __init__(s,a): s.a=a; s.q=[]
    def issue(s,text,tag): s.a(text); s.q.append(tag)
    def wait(s,tag):
        idx=max(i for i,t in enumerate(s.q) if t==tag) if tag in s.q else -1
        if idx<0: return
        n=len(s.q)-1-idx
        n=min(n,15)
        s.a(f"s_waitcnt lgkmcnt({n})"); s.q=s.q[idx+1:]
    def drain(s):
        if s.q: s.a("s_waitcnt lgkmcnt(0)")
        s.q=[]
def dma(a,m0expr,vreg,srd,soff,nt=True):
    a(f"{m0expr}")
    a(f"buffer_load_dwordx4 v{vreg}, s[{srd}:{srd+3}], {soff} offen{NT if nt else ''} lds")
def dma_K(a):
    dma(a,"s_mov_b32 m0, s34",DK,8,"s32")
    a("s_add_u32 s38, s32, 4096")
    dma(a,f"s_add_u32 m0, s34, {4*1088}",DK,8,"s38")
    a("s_add_u32 s32, s32, 8192")
def dma_V(a):
    dma(a,"s_mov_b32 m0, s35",DV,12,"s33")
    a("s_add_u32 s38, s33, 4096")
    dma(a,f"s_add_u32 m0, s35, {4*1152}",DV,12,"s38")
    a("s_add_u32 s33, s33, 8192")
def rot(a,r):
    pass
def adv_dst(a,r,cnt):
    a(f"s_add_u32 s{cnt}, s{cnt}, 1")
    a(f"s_and_b32 s{cnt}, s{cnt}, 3")
    a(f"s_cmp_eq_u32 s{cnt}, 0")
    a("s_cselect_b32 s38, s66, s67")
    a(f"s_add_u32 s{r}, s{r}, s38")
def adv_read(a,cnt,vregs):
    a(f"s_add_u32 s{cnt}, s{cnt}, 1")
    a(f"s_and_b32 s{cnt}, s{cnt}, 3")
    a(f"s_cmp_eq_u32 s{cnt}, 0")
    a("s_cselect_b32 s39, s66, s67")
    for v in vregs: a(f"v_add_u32 v{v}, s39, v{v}")
def k_read(lq,f,buf):
    s_,kt=f//2,f%2
    lq.issue(f"ds_read_b128 v[{FR+buf*4}:{FR+buf*4+3}], v{VK} offset:{kt*4352+s_*64}",("K",f))
def v_read(lq,t,buf):
    t10,t2=t%4,t//4
    lq.issue(f"ds_read_b64_tr_b16 v[{FR+buf*4}:{FR+buf*4+1}], v{VV+t10} offset:{t2*128}",("Va",t))
    lq.issue(f"ds_read_b64_tr_b16 v[{FR+buf*4+2}:{FR+buf*4+3}], v{VV+t10} offset:{4*1152+t2*128}",("V",t))
def qk(a,lq,cinit,pre_issued=0):
    for f in range(pre_issued,8): k_read(lq,f,f)
    for s_ in range(4):
        for kt in range(2):
            f=s_*2+kt
            lq.wait(("K",f))
            for qt in range(3):
                d=st(kt,qt)
                c = f"v[{d}:{d+3}]" if s_>0 else (f"v[{NEGM+qt*4}:{NEGM+qt*4+3}]" if cinit=='negm' else "0")
                a(f"v_mfma_f32_16x16x32_bf16 v[{d}:{d+3}], v[{FR+f*4}:{FR+f*4+3}], v[{qf(s_,qt)}:{qf(s_,qt)+3}], {c}")
def exp_sum(a):
    for qt in range(3):
        for kt in range(2):
            for r in range(4):
                a(f"v_exp_f32 v{st(kt,qt)+r}, v{st(kt,qt)+r}")
    for qt in range(3):
        b0,b1=st(0,qt),st(1,qt)
        a(f"v_add_f32 v{TS+qt}, v{b0}, v{b0+1}")
        a(f"v_add_f32 v{T0+qt}, v{b0+2}, v{b0+3}")
    for qt in range(3):
        b0,b1=st(0,qt),st(1,qt)
        a(f"v_add_f32 v{TS+qt}, v{TS+qt}, v{b1}")
        a(f"v_add_f32 v{T0+qt}, v{T0+qt}, v{b1+1}")
    for qt in range(3):
        b0,b1=st(0,qt),st(1,qt)
        a(f"v_add_f32 v{TS+qt}, v{TS+qt}, v{b1+2}")
        a(f"v_add_f32 v{T0+qt}, v{T0+qt}, v{b1+3}")
    for qt in range(3):
        a(f"v_add_f32 v{TS+qt}, v{TS+qt}, v{T0+qt}")
def cvt_p(a):
    for qt in range(3):
        for kt in range(2):
            b=st(kt,qt)
            a(f"v_cvt_pk_bf16_f32 v{P+qt*4+kt*2}, v{b}, v{b+1}")
            a(f"v_cvt_pk_bf16_f32 v{P+qt*4+kt*2+1}, v{b+2}, v{b+3}")
    for qt in range(3): a(f"v_add_f32 v{L+qt}, v{L+qt}, v{TS+qt}")
def pv(a,lq,first,pre,then_k=False):
    for t in range(8):
        nxt=t+pre
        lq.wait(("V",t))
        for qt in range(3):
            d=acc(t,qt)
            c = "0" if first else f"v[{d}:{d+3}]"
            a(f"v_mfma_f32_16x16x32_bf16 v[{d}:{d+3}], v[{FR+t*4}:{FR+t*4+3}], v[{P+qt*4}:{P+qt*4+3}], {c}")
        if nxt<8: v_read(lq,nxt,nxt)
        if then_k: k_read(lq,t,t)
def rowmax(a):
    for qt in range(3):
        b0,b1=st(0,qt),st(1,qt)
        a(f"v_max3_f32 v{TS+qt}, v{b0}, v{b0+1}, v{b0+2}")
        a(f"v_max3_f32 v{TS+qt}, v{TS+qt}, v{b0+3}, v{b1}")
        a(f"v_max3_f32 v{TS+qt}, v{TS+qt}, v{b1+1}, v{b1+2}")
        a(f"v_max_f32 v{TS+qt}, v{TS+qt}, v{b1+3}")
    xreduce(a,"v_max_f32",TS)
def xreduce(a,op,base):
    for qt in range(3):
        a(f"v_mov_b32 v{T0+qt}, v{base+qt}")
    for qt in range(3):
        a(f"v_permlane32_swap_b32 v{base+qt}, v{T0+qt}")
    for qt in range(3):
        a(f"{op} v{base+qt}, v{base+qt}, v{T0+qt}")
    for qt in range(3):
        a(f"v_mov_b32 v{T0+qt}, v{base+qt}")
    for qt in range(3):
        a(f"v_permlane16_swap_b32 v{base+qt}, v{T0+qt}")
    for qt in range(3):
        a(f"{op} v{base+qt}, v{base+qt}, v{T0+qt}")
def sub_ts(a):
    for qt in range(3):
        for kt in range(2):
            for r in range(4):
                a(f"v_sub_f32 v{st(kt,qt)+r}, v{st(kt,qt)+r}, v{TS+qt}")
def rare(a,lq,name):
    a.label(f"RARE_{name}")
    a("s_waitcnt lgkmcnt(0)"); lq.q=[]
    qk(a,lq,'negm')
    rowmax(a)
    for qt in range(3): a(f"v_max_f32 v{TS+qt}, 0, v{TS+qt}")
    sub_ts(a)
    for qt in range(3):
        for r in range(4): a(f"v_sub_f32 v{NEGM+qt*4+r}, v{NEGM+qt*4+r}, v{TS+qt}")
        a(f"v_sub_f32 v{T0+qt}, 0, v{TS+qt}")
        a(f"v_exp_f32 v{T0+qt}, v{T0+qt}")
    for qt in range(3):
        a(f"v_mul_f32 v{L+qt}, v{L+qt}, v{T0+qt}")
        for t in range(8):
            for r in range(4): a(f"v_mul_f32 v{acc(t,qt)+r}, v{acc(t,qt)+r}, v{T0+qt}")
    a.flush()
    a(f"s_branch SM_{name}")
def epilogue(a):
    xreduce(a,"v_add_f32",L)
    for qt in range(3): a(f"v_rcp_f32 v{L+qt}, v{L+qt}")
    for qt in range(3):
        a(f"v_mov_b32 v{NEGM+qt*4}, v{L+qt}"); a(f"v_mov_b32 v{NEGM+qt*4+1}, v{L+qt}")
    a(f"v_and_b32 v{T0+4}, 63, v{T0+11}")
    a(f"v_lshlrev_b32 v{T0+4}, 4, v{T0+4}")
    for qt in range(3):
        for s4 in range(4):
            o=S+((qt*4+s4)%6)*4
            for h in range(2):
                b=acc(2*s4+h,qt)
                m=NEGM+qt*4
                a(f"v_pk_mul_f32 v[{b}:{b+1}], v[{b}:{b+1}], v[{m}:{m+1}]"); a(f"v_pk_mul_f32 v[{b+2}:{b+3}], v[{b+2}:{b+3}], v[{m}:{m+1}]")
                a(f"v_cvt_pk_bf16_f32 v{o+2*h}, v{b}, v{b+1}")
                a(f"v_cvt_pk_bf16_f32 v{o+2*h+1}, v{b+2}, v{b+3}")
            a(f"s_add_u32 s38, s36, {(qt*4+s4)*1024}")
            a(f"buffer_store_dwordx4 v[{o}:{o+3}], v{T0+4}, s[24:27], s38 offen{OST}")
TQ_NOW=False; TQ_NOX=False; XCC=False
def piece(a,m0expr,pre,vreg,srd,soff,nt):
    def f():
        a(m0expr)
        if pre: a(pre)
        a(f"buffer_load_dwordx4 v{vreg}, s[{srd}:{srd+3}], {soff} offen{NT if nt else ''} lds")
    return f
def q_pieces(a,role):
    L=[piece(a,f"s_add_u32 m0, s42, {12288+role*8704}",None,DW,16,"s43",NT_WQ),
       piece(a,f"s_add_u32 m0, s42, {12288+role*8704+4*1088}",f"s_add_u32 s38, s43, {16*8192}",DW,16,"s38",NT_WQ),
       piece(a,"s_mov_b32 m0, s44",None,DX,20,"s45",False)]
    if role==0: L.append(piece(a,f"s_add_u32 m0, s44, {8*1024}",f"s_add_u32 s38, s45, {8*16*1024}",DX,20,"s38",False))
    last=L[-1]
    def fin():
        last()
        a(f"s_add_u32 s43, s43, {32*8192}")
        a("s_add_u32 s45, s45, 64")
        if QROT:
            a("s_cmp_eq_u32 s43, 0x400000"); a("s_cselect_b32 s38, 1024, 0"); a("s_cselect_b32 s43, 0, s43"); a("s_sub_u32 s45, s45, s38")
        a("s_add_u32 s46, s46, 1"); a("s_and_b32 s46, s46, 3"); a("s_cmp_eq_u32 s46, 0")
        a("s_cselect_b32 s38, s68, s69")
        a("s_add_u32 s42, s42, s38"); a("s_add_u32 s44, s44, s38")
    L[-1]=fin
    return L
def q_dma(a,role):
    for f in q_pieces(a,role): f()
def k_pieces(a):
    def fin():
        piece(a,f"s_add_u32 m0, s34, {4*1088}","s_add_u32 s38, s32, 4096",DK,8,"s38",True)()
        a("s_add_u32 s32, s32, 8192"); adv_dst(a,34,48)
    return [piece(a,"s_mov_b32 m0, s34",None,DK,8,"s32",True),fin]
def v_pieces(a):
    def fin():
        piece(a,f"s_add_u32 m0, s35, {4*1152}","s_add_u32 s38, s33, 4096",DV,12,"s38",True)()
        a("s_add_u32 s33, s33, 8192"); adv_dst(a,35,49)
    return [piece(a,"s_mov_b32 m0, s35",None,DV,12,"s33",True),fin]
def kv_pieces(a,doK,doV,vfirst=False):
    L=[]
    if vfirst and doV: L+=v_pieces(a)
    if doK: L+=k_pieces(a)
    if doV and not vfirst: L+=v_pieces(a)
    return L
NDEF=3
SLOTS={0:[0,2,4,6,7,7,7,7],1:[1,3,5,6,7,7,7,7]}
NOMMA=False
def q_mfma(a,t,XB):
    if NOMMA: return
    for qt in range(3):
        d=acc(t,qt)
        a(f"v_mfma_f32_16x16x32_bf16 v[{d}:{d+3}], v[{FR+t*4}:{FR+t*4+3}], v[{XB+qt*4}:{XB+qt*4+3}], v[{d}:{d+3}]")
def q_step(a,lq,role,issue_q,kv,vm,par,have_def):
    fine = issue_q
    XB=(S if par==0 else P); XP=(P if par==0 else S)
    pcs=[]
    if issue_q and not NOQDMA: pcs+=q_pieces(a,role)
    if kv=="KV0": pcs+=kv_pieces(a,True,True)
    if kv=="KV": pcs+=kv_pieces(a,True,True)
    if kv=="K2": pcs+=kv_pieces(a,True,role==0)
    slots=SLOTS[role]
    st={'i':0}
    def after(g):
        while st['i']<len(pcs) and slots[min(st['i'],len(slots)-1)]<=g:
            pcs[st['i']](); st['i']+=1
    if fine: tq(a,0)
    def w_read(t):
        t10,t2=t%4,t//4
        lq.issue(f"ds_read_b64_tr_b16 v[{FR+t*4}:{FR+t*4+1}], v{VW+t10} offset:{t2*128}",("Wa",t))
        lq.issue(f"ds_read_b64_tr_b16 v[{FR+t*4+2}:{FR+t*4+3}], v{VW+t10} offset:{1088+t2*128}",("W",t))
    lq.issue(f"ds_read_b128 v[{XB}:{XB+3}], v{VX} offset:0",("X",0))
    w_read(0)
    for qt in range(1,3):
        lq.issue(f"ds_read_b128 v[{XB+qt*4}:{XB+qt*4+3}], v{VX} offset:{qt*1024}",("X",qt))
    PRE=8-NDEF
    w_read(1)
    if fine: tq(a,1)
    g=0
    for t in range(PRE,8):
        if have_def: q_mfma(a,t,XP)
        if t-PRE+2<PRE: w_read(t-PRE+2)
        after(g); g+=1
    for t in range(NDEF+2,PRE): w_read(t)
    a("s_add_u32 s47, s47, 1"); a("s_and_b32 s47, s47, 3"); a("s_cmp_eq_u32 s47, 0")
    a("s_cselect_b32 s39, s68, s69")
    for t in range(PRE):
        for qt in range(3):
            if qt==0: lq.wait(("W",t))
            if t==0: lq.wait(("X",qt))
            d=acc(t,qt)
            if not NOMMA: a(f"v_mfma_f32_16x16x32_bf16 v[{d}:{d+3}], v[{FR+t*4}:{FR+t*4+3}], v[{XB+qt*4}:{XB+qt*4+3}], v[{d}:{d+3}]")
        if t<NDEF: w_read(PRE+t)
        if t==NDEF:
            a(f"v_add_u32 v{VX}, s39, v{VX}")
            for v in [VW+i for i in range(4)]: a(f"v_add_u32 v{v}, s39, v{v}")
        after(g); g+=1
    after(99)
    if fine: tq(a,2)
    if fine: tq(a,3)
    lq.drain()
    if vm is not None: a(f"s_waitcnt vmcnt({vm})")
    if fine: tq(a,4)
    a("s_barrier")
    if fine: tq(a,5)
def q_finish(a,par):
    XB=(S if par==0 else P)
    for t in range(8-NDEF,8): q_mfma(a,t,XB)
def kv_issue(a,doK,doV,vfirst=False):
    if vfirst and doV:
        dma_V(a); adv_dst(a,35,49)
    if doK:
        dma_K(a); adv_dst(a,34,48)
    if doV and not vfirst:
        dma_V(a); adv_dst(a,35,49)
def convert_q(a):
    a(f"s_mov_b32 s38, {C_SCALE:#x}"); a(f"s_mov_b32 s39, {C_SCALE:#x}")
    for s_ in range(4):
        for qt in range(3):
            o=qf(s_,qt)
            for h in range(2):
                b=acc(2*s_+h,qt)
                a(f"v_pk_mul_f32 v[{b}:{b+1}], v[{b}:{b+1}], s[38:39]"); a(f"v_pk_mul_f32 v[{b+2}:{b+3}], v[{b+2}:{b+3}], s[38:39]")
                a(f"v_cvt_pk_bf16_f32 v{o+2*h}, v{b}, v{b+1}")
                a(f"v_cvt_pk_bf16_f32 v{o+2*h+1}, v{b+2}, v{b+3}")
            a(f"v_permlane32_swap_b32 v{o}, v{o+2}")
            a(f"v_permlane32_swap_b32 v{o+1}, v{o+3}")
            a(f"v_permlane16_swap_b32 v{o}, v{o+2}")
            a(f"v_permlane16_swap_b32 v{o+1}, v{o+3}")
def first_softmax(a,lq):
    qk(a,lq,'zero')
    rowmax(a)
    sub_ts(a)
    for qt in range(3):
        for r in range(4): a(f"v_sub_f32 v{NEGM+qt*4+r}, 0, v{TS+qt}")
        a(f"v_mov_b32 v{L+qt}, 0")
    exp_sum(a)
def check(a,name):
    a(f"v_max3_f32 v{T0}, v{TS}, v{TS+1}, v{TS+2}")
    a(f"v_cmp_lt_f32 vcc, s37, v{T0}")
    a("s_nop 1")
    a(f"s_cbranch_vccnz RARE_{name}")
def role_code(a,role):
    R=f"R{role}"
    lq=LQ(a)
    vmq = 8 if role==0 else 6
    n=4 if role==0 else 3
    if role==1 and QPRIO: a("s_setprio 1")
    q_step(a,lq,role,True,"KV0",2*n+4,0,False)
    q_step(a,lq,role,True,None,2*n+4,1,True)
    q_step(a,lq,role,True,None,2*n+4,0,True)
    a("s_mov_b32 s31, 3")
    a.label(f"QL_{R}",pad=False)
    q_step(a,lq,role,True,None,vmq,1,True)
    a("s_add_u32 s31, s31, 1")
    q_step(a,lq,role,True,None,vmq,0,True)
    a("s_add_u32 s31, s31, 1"); a("s_cmp_lt_u32 s31, 13"); a(f"s_cbranch_scc1 QL_{R}")
    q_step(a,lq,role,False,"KV",vmq,1,True)
    q_step(a,lq,role,False,None,4,0,True)
    q_step(a,lq,role,False,"K2",None,1,True)
    q_finish(a,1)
    if role==1 and QPRIO: a("s_setprio 0")
    a.flush()
    ts(a,2)
    convert_q(a)
    ts(a,3)
    kv_issue(a,True,True,vfirst=(role==1))
    first_softmax(a,lq)
    PRE=4
    if role==0:
        for t in range(PRE): v_read(lq,t,t)
        cvt_p(a)
        pv(a,lq,True,PRE)
        adv_read(a,50,[VK]); adv_read(a,51,[VV+i for i in range(4)])
        a("s_waitcnt vmcnt(8)")
        a("s_barrier")
    else:
        for t in range(PRE): v_read(lq,t,t)
        cvt_p(a)
        for i in range(96): a(f"v_mov_b32 v{ACC+i}, 0")
        adv_read(a,50,[VK])
        a("s_waitcnt vmcnt(6)")
        lq.drain()
        a("s_barrier")
    ts(a,4)
    a("s_mov_b32 s31, 1")
    a.label(f"LOOP_{R}",pad=False)
    lq.q=[]
    a("s_cmp_gt_u32 s31, 12")
    a(f"s_cbranch_scc1 NOK_{R}")
    kv_issue(a,True,True,vfirst=(role==1))
    if role==1:
        a(f"s_branch DMADONE_{R}")
        a.label(f"NOK_{R}",pad=False)
        a("s_cmp_gt_u32 s31, 13")
        a(f"s_cbranch_scc1 DMADONE_{R}")
        kv_issue(a,False,True)
        a.label(f"DMADONE_{R}",pad=False)
    else:
        a.label(f"NOK_{R}",pad=False)
    if role==1:
        pv(a,lq,False,PRE,then_k=True)
        adv_read(a,51,[VV+i for i in range(4)])
        a("s_setprio 1")
        qk(a,lq,'negm',pre_issued=8)
        a("s_setprio 0")
    else:
        a("s_setprio 1")
        qk(a,lq,'negm')
        a("s_setprio 0")
    a.label(f"SM_{R}",pad=False)
    lq.q=[]
    exp_sum(a)
    check(a,R)
    for t in range(PRE): v_read(lq,t,t)
    cvt_p(a)
    if role==0:
        pv(a,lq,False,PRE)
        adv_read(a,50,[VK]); adv_read(a,51,[VV+i for i in range(4)])
        full=8
    else:
        adv_read(a,50,[VK])
        full=6
    lq.drain()
    a("s_cmp_gt_u32 s31, 12")
    a(f"s_cbranch_scc1 TAILW_{R}")
    a(f"s_waitcnt vmcnt({full})")
    a(f"s_branch WD_{R}")
    a.label(f"TAILW_{R}",pad=False)
    a("s_waitcnt vmcnt(4)")
    a("s_cmp_eq_u32 s31, 13")
    a(f"s_cbranch_scc1 WD_{R}")
    a("s_waitcnt vmcnt(0)")
    a.label(f"WD_{R}",pad=False)
    a("s_barrier")
    a("s_add_u32 s31, s31, 1"); a("s_cmp_lt_u32 s31, 16"); a(f"s_cbranch_scc1 LOOP_{R}")
    lq.q=[]
    if role==1:
        pv(a,lq,False,PRE)
    a.flush()
    ts(a,5)
    if WOPF:
        a("s_and_b32 s54, s2, 3"); a("s_lshl_b32 s54, s54, 20"); a("s_lshr_b32 s55, s2, 3"); a("s_lshl_b32 s55, s55, 15"); a("s_add_u32 s54, s54, s55")
        a("s_add_u32 s88, s92, s54"); a("s_addc_u32 s89, s93, 0"); a("s_mov_b32 s90, 32768"); a("s_mov_b32 s91, 0x20000")
        a(f"v_and_b32 v180, 31, v{T0+11}"); a("v_lshlrev_b32 v180, 7, v180"); a("s_lshl_b32 s54, s28, 12")
        a("buffer_load_dword v181, v180, s[88:91], s54 offen")
    epilogue(a)
    if DBG:
        a("s_waitcnt vmcnt(0)")
        ts(a,6)
        if XCC: a("s_getreg_b32 s84, hwreg(HW_REG_XCC_ID)"); a("s_getreg_b32 s82, hwreg(HW_REG_HW_ID)") if False else None
        ts_dump(a,7)
    a("s_branch K1_END")
    rare(a,lq,R)
def prologue(a,mapping):
    a("s_cmp_ge_u32 s2, 256"); a("s_cbranch_scc1 K1_END")
    ts(a,0); tsf(a,0)
    a(f"v_mov_b32 v{T0+11}, v0")
    a("v_lshrrev_b32 v1, 6, v0"); a("v_readfirstlane_b32 s28, v1")
    a("s_lshr_b32 s29, s28, 2")
    a("s_and_b32 s30, s28, 3")
    a("s_and_b32 s3, s2, 7"); a("s_lshr_b32 s4, s3, 2"); a("s_and_b32 s5, s3, 3")
    a("s_lshr_b32 s6, s2, 3"); a("s_and_b32 s7, s6, 7"); a("s_lshr_b32 s6, s6, 3")
    a("s_lshl_b32 s5, s5, 2"); a("s_add_u32 s5, s5, s6"); a("s_lshl_b32 s5, s5, 1"); a("s_add_u32 s5, s5, s29")
    a("s_mul_i32 s6, s4, 40")
    a("s_add_u32 s52, s0, s6"); a("s_addc_u32 s53, s1, 0")
    a("s_load_dwordx4 s[56:59], s[52:53], 0")
    if WOPF: a("s_load_dwordx2 s[92:93], s[52:53], 32")
    a("s_load_dwordx4 s[60:63], s[52:53], 16")
    a("s_load_dwordx2 s[64:65], s[0:1], 96")
    a("s_lshl_b32 s6, s7, 5"); a("s_add_u32 s6, s6, s5")
    a("s_waitcnt lgkmcnt(0)")
    tsf(a,1)
    a("s_lshr_b32 s54, s6, 15"); a("s_lshl_b32 s55, s6, 17")
    a("s_add_u32 s8, s58, s55"); a("s_addc_u32 s9, s59, s54"); a("s_mov_b32 s10, 131072"); a("s_mov_b32 s11, 0x20000")
    a("s_add_u32 s12, s60, s55"); a("s_addc_u32 s13, s61, s54"); a("s_mov_b32 s14, 131072"); a("s_mov_b32 s15, 0x20000")
    a("s_lshl_b32 s54, s5, 8")
    a("s_add_u32 s16, s62, s54"); a("s_addc_u32 s17, s63, 0"); a("s_sub_u32 s18, 0x400000, s54"); a("s_mov_b32 s19, 0x20000")
    a("s_mul_i32 s54, s7, 196608")
    a("s_add_u32 s20, s56, s54"); a("s_addc_u32 s21, s57, 0"); a("s_mov_b32 s22, 196608"); a("s_mov_b32 s23, 0x20000")
    a("s_lshl_b32 s54, s4, 8"); a("s_add_u32 s54, s54, s6"); a("s_mul_i32 s54, s54, 49152")
    a("s_add_u32 s24, s64, s54"); a("s_addc_u32 s25, s65, 0"); a("s_mov_b32 s26, 49152"); a("s_mov_b32 s27, 0x20000")
    a("s_mul_i32 s36, s30, 12288")
    a(f"s_mov_b32 s37, {THR:#x}")
    a(f"s_mov_b32 s66, {3*KVS}"); a(f"s_mov_b32 s67, {-KVS & 0xffffffff:#x}"); a(f"s_mov_b32 s68, {3*QS}"); a(f"s_mov_b32 s69, {-QS & 0xffffffff:#x}"); a("s_mov_b32 s70, 0x78")
    a("v_and_b32 v1, 63, v0")
    a("v_lshrrev_b32 v2, 4, v1")
    a("v_and_b32 v3, 15, v1")
    a("s_lshl_b32 s54, s30, 2")
    a("v_add_u32 v4, s54, v2")
    a("v_xor_b32 v5, v3, v2")
    a("v_lshlrev_b32 v5, 4, v5"); a(f"v_lshl_add_u32 v{DK}, v4, 8, v5")
    a("v_lshlrev_b32 v5, 1, v2"); a("v_xor_b32 v5, v3, v5"); a("v_lshlrev_b32 v5, 4, v5")
    a(f"v_lshl_add_u32 v{DV}, v4, 8, v5"); a(f"v_lshl_add_u32 v{DW}, v4, 13, v5")
    a("v_lshlrev_b32 v5, 1, v2"); a("v_lshrrev_b32 v5, v5, s70"); a("v_and_b32 v5, 3, v5")
    a("v_and_b32 v6, 3, v1"); a("v_xor_b32 v6, v6, v5"); a("v_lshlrev_b32 v6, 4, v6")
    a("v_lshrrev_b32 v7, 2, v1"); a(f"v_lshl_add_u32 v{DX}, v7, 10, v6")
    a("v_lshrrev_b32 v4, 2, v3"); a("v_and_b32 v5, 3, v3")
    a("v_mul_u32_u24 v6, 1088, v4"); a("v_lshl_add_u32 v6, v5, 8, v6")
    a("v_xor_b32 v7, v2, v5"); a("v_lshl_add_u32 v6, v7, 4, v6")
    a(f"s_mul_i32 s54, s29, {ROLE_SZ}"); a(f"s_add_u32 s54, s54, {KV_TOP}")
    a(f"v_add_u32 v{VK}, s54, v6")
    a("v_lshrrev_b32 v6, 1, v5"); a("v_and_b32 v7, 1, v5"); a("v_lshlrev_b32 v7, 3, v7")
    a("v_lshl_add_u32 v7, v6, 4, v7"); a("v_lshl_add_u32 v7, v4, 8, v7")
    a("v_mul_u32_u24 v8, 1152, v2"); a(f"s_add_u32 s55, s54, {KSL}"); a("v_add_u32 v8, s55, v8")
    a("v_mul_u32_u24 v9, 2176, v2"); a(f"s_mul_i32 s55, s29, 8704"); a(f"s_add_u32 s55, s55, {3*QS+12288}"); a("v_add_u32 v9, s55, v9")
    for t10 in range(4):
        a(f"v_xor_b32 v10, {t10}, v4"); a("v_lshl_add_u32 v10, v10, 5, v7")
        a(f"v_add_u32 v{VV+t10}, v8, v10"); a(f"v_add_u32 v{VW+t10}, v9, v10")
    a("v_lshlrev_b32 v6, 1, v4"); a("v_lshrrev_b32 v6, v6, s70"); a("v_and_b32 v6, 3, v6"); a("v_xor_b32 v6, v6, v2")
    a("v_lshlrev_b32 v6, 4, v6"); a("v_lshl_add_u32 v6, v3, 6, v6")
    a("s_mul_i32 s55, s30, 3072"); a(f"s_add_u32 s55, s55, {3*QS}"); a(f"v_add_u32 v{VX}, s55, v6")
    a("s_mov_b32 s32, 0"); a("s_mov_b32 s33, 0")
    a("s_mul_i32 s55, s30, 1088"); a("s_add_u32 s34, s54, s55")
    a("s_mul_i32 s55, s30, 1152"); a("s_add_u32 s35, s54, s55"); a(f"s_add_u32 s35, s35, {KSL}")
    a("s_mov_b32 s48, 0"); a("s_mov_b32 s49, 0"); a("s_mov_b32 s50, 0"); a("s_mov_b32 s51, 0")
    a("s_mul_i32 s55, s30, 1088"); a(f"s_add_u32 s42, s55, {3*QS}"); a("s_mov_b32 s43, 0")
    a("s_lshl_b32 s55, s28, 10"); a(f"s_add_u32 s44, s55, {3*QS}"); a("s_lshl_b32 s45, s28, 14")
    a("s_mov_b32 s46, 0"); a("s_mov_b32 s47, 0")
    if QROT:
        a("s_lshr_b32 s55, s2, 3"); a("s_and_b32 s55, s55, 7"); a(f"s_mul_i32 s55, s55, {QROT[0]}")
        a("s_lshr_b32 s54, s2, 6"); a(f"s_mul_i32 s54, s54, {QROT[1]}"); a("s_add_u32 s55, s55, s54"); a("s_and_b32 s55, s55, 14")
        a("s_lshl_b32 s43, s55, 18"); a("s_lshl_b32 s55, s55, 6"); a("s_add_u32 s45, s45, s55")
def k1():
    a=Asm(); a.tag='k1'; a.uid=0
    prologue(a,None)
    if PFQ:
        a("s_lshr_b32 s52, s2, 3")
        a("s_and_b32 s53, s2, 3"); a("s_lshl_b32 s53, s53, 11")
        a("s_lshl_b32 s54, s52, 4"); a("s_lshl_b32 s55, s28, 1"); a("s_add_u32 s54, s54, s55"); a("s_lshl_b32 s54, s54, 13"); a("s_add_u32 s54, s54, s53")
        a("v_and_b32 v10, 31, v1"); a("v_lshrrev_b32 v11, 4, v10"); a("v_and_b32 v10, 15, v10"); a("v_lshlrev_b32 v10, 7, v10"); a("v_lshl_add_u32 v10, v11, 13, v10")
        if not DBG:
            a("s_mov_b32 s72, s62"); a("s_mov_b32 s73, s63"); a("s_mov_b32 s74, 0x400000"); a("s_mov_b32 s75, 0x20000")
        if DBG:
            a("s_mov_b32 s88, s62"); a("s_mov_b32 s89, s63"); a("s_mov_b32 s90, 0x400000"); a("s_mov_b32 s91, 0x20000")
        W = 88 if DBG else 72
        a(f"buffer_load_dword v170, v10, s[{W}:{W+3}], s54 offen")
        a("s_mul_i32 s54, s52, 384"); a("s_mul_i32 s55, s28, 48"); a("s_add_u32 s54, s54, s55"); a("s_lshl_b32 s54, s54, 7")
        a("v_min_u32 v10, 47, v1"); a("v_lshlrev_b32 v10, 7, v10")
        X = 92 if DBG else 76
        a(f"s_mov_b32 s{X}, s56"); a(f"s_mov_b32 s{X+1}, s57"); a(f"s_mov_b32 s{X+2}, {8*196608}"); a(f"s_mov_b32 s{X+3}, 0x20000")
        a(f"buffer_load_dword v171, v10, s[{X}:{X+3}], s54 offen")
    a("s_cmp_eq_u32 s29, 1"); a("s_cbranch_scc1 START_R1")
    for role in range(2):
        if role==1: a.label("START_R1")
        for s_ in range(3):
            q_dma(a,role)
            if QBAR and s_<QBAR: a('s_barrier')
        for i in range(96): a(f"v_mov_b32 v{ACC+i}, 0")
        n_first = (4 if role==0 else 3)
        if SFINE:
            tsf(a,2)
            a(f"s_waitcnt vmcnt({3*n_first+4})"); tsf(a,3)
            a(f"s_waitcnt vmcnt({3*n_first})"); tsf(a,4)
            a(f"s_waitcnt vmcnt({2*n_first})"); tsf(a,5)
        a(f"s_waitcnt vmcnt({2*n_first})")
        a("s_barrier")
        ts(a,1); tsf(a,6)
        role_code(a,role)
    a.label("K1_END")
    return a.text()
```

```python
from asmlib import *
import gen_k1
from gen_k1 import ts, ts_dump
ACC=0
OB=96
WF=192
VA=224
VO=228
VWO=229
VT=230
LDS2=131072
DEPTH=3
NT_O=""; NT_W=""; PF=True; PF_STEPS=[-1,-1,1,5]
PFD=6; BAR=True; ILV=True; SAMEH=False; NO_O=False; NO_W=False; CLK=False
VPO=242; VPW=241; VDUM=244; WAITPF=True
def prefetch(a,k):
    a(f"global_load_dword v{VDUM}, v[{VPO}:{VPO+1}], off")
    a(f"v_add_co_u32 v{VPO}, vcc, v{VPO}, v{VPW}")
    a(f"v_addc_co_u32 v{VPO+1}, vcc, 0, v{VPO+1}, vcc")
def acc(nt,qt): return ACC+(nt*6+qt)*4
def issue(a,slot):
    nt_o=NT_O; nt_w=NT_W
    for qt in range(6 if not NO_O else 0):
        if qt==0: so="s30"
        else:
            a(f"s_add_u32 s38, s30, {qt*4096}"); so="s38"
        r=OB+slot*24+qt*4
        a(f"buffer_load_dwordx4 v[{r}:{r+3}], v{VO}, s[8:11], {so} offen{nt_o}")
    for i in range(4 if not NO_W else 0):
        a(f"s_add_u32 m0, s32, {slot*4096+i*1024}")
        if i==0: so="s31"
        else:
            a(f"s_add_u32 s38, s31, {i*8192}"); so="s38"
        a(f"buffer_load_dwordx4 v{VWO}, s[12:15], {so} offen{nt_w} lds")
    if not SAMEH:
        a(f"s_add_u32 s30, s30, {2*49152}")
        a(f"s_add_u32 s31, s31, {2*128*1024}")
def issue_pieces(a,slot):
    L=[]
    def oload(qt):
        def f():
            if qt==0: so="s30"
            else:
                a(f"s_add_u32 s38, s30, {qt*4096}"); so="s38"
            r=OB+slot*24+qt*4
            a(f"buffer_load_dwordx4 v[{r}:{r+3}], v{VO}, s[8:11], {so} offen{NT_O}")
        return f
    def wload(i):
        def f():
            a(f"s_add_u32 m0, s32, {slot*4096+i*1024}")
            so="s31"
            if i>0:
                a(f"s_add_u32 s38, s31, {i*8192}"); so="s38"
            a(f"buffer_load_dwordx4 v{VWO}, s[12:15], {so} offen{NT_W} lds")
            if i==3 and not SAMEH:
                a(f"s_add_u32 s30, s30, {2*49152}")
                a(f"s_add_u32 s31, s31, {2*128*1024}")
        return f
    if not NO_O: L+=[oload(q) for q in range(6)]
    L+=[wload(i) for i in range(4)]
    return L
def step(a,slot,do_issue,vm,first,wset,pf=None):
    a(f"s_waitcnt vmcnt({vm})")
    if BAR: a("s_barrier")
    W=WF+wset*16
    for nt in range(4):
        a(f"ds_read_b64_tr_b16 v[{W+nt*4}:{W+nt*4+1}], v{VA+nt} offset:{slot*4096}")
        a(f"ds_read_b64_tr_b16 v[{W+nt*4+2}:{W+nt*4+3}], v{VA+nt} offset:{slot*4096+2048}")
    if pf is not None: prefetch(a,pf)
    pcs = issue_pieces(a,(slot+DEPTH)%4) if do_issue else []
    if not ILV:
        for f in pcs: f()
        pcs=[]
    k=0
    for nt in range(4):
        a(f"s_waitcnt lgkmcnt({6-2*nt})")
        for qt in range(6):
            d=acc(nt,qt); o=OB+slot*24+qt*4
            c="0" if first else f"v[{d}:{d+3}]"
            a(f"v_mfma_f32_16x16x32_bf16 v[{d}:{d+3}], v[{W+nt*4}:{W+nt*4+3}], v[{o}:{o+3}], {c}")
            k+=1
            if k%2==0 and pcs: pcs.pop(0)()
    for f in pcs: f()
def k2():
    a=Asm(); a.tag='k2'; a.uid=0
    a("s_cmp_ge_u32 s2, 256"); a("s_cbranch_scc1 K2_END")
    ts(a,0)
    if CLK: a("s_memtime s[84:85]"); a("s_waitcnt lgkmcnt(0)")
    a("v_lshrrev_b32 v1, 6, v0"); a("v_readfirstlane_b32 s28, v1")
    a(f"v_mov_b32 v{VT+10}, v0")
    a("s_and_b32 s3, s2, 7"); a("s_lshr_b32 s4, s3, 2"); a("s_and_b32 s5, s3, 3"); a("s_lshr_b32 s6, s2, 3")
    a("s_lshl_b32 s5, s5, 1"); a("s_and_b32 s7, s6, 1"); a("s_add_u32 s5, s5, s7")
    a("s_lshr_b32 s7, s6, 1"); a("s_and_b32 s7, s7, 1")
    a("s_lshr_b32 s6, s6, 2")
    a("s_mul_i32 s16, s4, 40"); a("s_add_u32 s16, s0, s16"); a("s_addc_u32 s17, s1, 0")
    a("s_load_dwordx2 s[18:19], s[16:17], 32")
    a("s_load_dwordx4 s[20:23], s[0:1], 80")
    a("s_load_dwordx2 s[24:25], s[0:1], 96")
    a("s_and_b32 s33, s28, 3"); a("s_lshr_b32 s34, s28, 2")
    a("s_waitcnt lgkmcnt(0)")
    a("s_lshl_b32 s35, s4, 3"); a("s_add_u32 s35, s35, s5"); a(f"s_mul_i32 s36, s35, {32*49152}")
    a("s_add_u32 s8, s24, s36"); a("s_addc_u32 s9, s25, 0"); a(f"s_mov_b32 s10, {32*49152}"); a("s_mov_b32 s11, 0x20000")
    a("s_lshl_b32 s36, s6, 7"); a("s_add_u32 s12, s18, s36"); a("s_addc_u32 s13, s19, 0"); a("s_sub_u32 s14, 0x400000, s36"); a("s_mov_b32 s15, 0x20000")
    a("s_mul_i32 s36, s5, 192"); a("s_mul_i32 s37, s7, 96"); a("s_add_u32 s36, s36, s37"); a("s_lshl_b32 s36, s36, 11")
    a("s_lshl_b32 s37, s4, 10"); a("s_add_u32 s36, s36, s37"); a("s_lshl_b32 s37, s6, 7"); a("s_add_u32 s36, s36, s37")
    a("s_add_u32 s40, s20, s36"); a("s_addc_u32 s41, s21, 0"); a(f"s_sub_u32 s42, {8*192*2048}, s36"); a("s_mov_b32 s43, 0x20000")
    a("s_mul_i32 s30, s34, 49152"); a("s_mul_i32 s37, s7, 24576"); a("s_add_u32 s30, s30, s37"); a("s_lshl_b32 s37, s33, 10"); a("s_add_u32 s30, s30, s37")
    a("s_lshl_b32 s31, s34, 17"); a("s_lshl_b32 s37, s33, 15"); a("s_add_u32 s31, s31, s37")
    a("s_lshl_b32 s32, s28, 14")
    a("v_and_b32 v1, 63, v0")
    a(f"v_lshlrev_b32 v{VO}, 4, v1")
    a("v_lshrrev_b32 v2, 3, v1"); a("v_and_b32 v3, 7, v1"); a("v_and_b32 v4, 6, v2"); a("v_xor_b32 v3, v3, v4")
    a("v_lshlrev_b32 v3, 4, v3"); a(f"v_lshl_add_u32 v{VWO}, v2, 10, v3")
    a("s_lshr_b32 s48, s2, 3"); a("s_lshr_b32 s49, s48, 1"); a("s_mul_i32 s49, s49, 3072")
    a("s_mul_i32 s50, s33, 768"); a("s_add_u32 s49, s49, s50")
    a("s_mul_i32 s50, s34, 49152"); a("s_add_u32 s49, s49, s50")
    a("s_add_u32 s52, s8, s49"); a("s_addc_u32 s53, s9, 0")
    a("s_lshl_b32 s49, s48, 12"); a("s_lshl_b32 s50, s33, 10"); a("s_add_u32 s49, s49, s50")
    a("s_lshl_b32 s50, s34, 17"); a("s_add_u32 s49, s49, s50")
    a("s_add_u32 s54, s18, s49"); a("s_addc_u32 s55, s19, 0")
    a("v_cmp_gt_u32 vcc, 6, v1")
    a("v_subrev_u32 v2, 6, v1"); a("v_min_u32 v2, 7, v2"); a("v_cndmask_b32 v2, v2, v1, vcc"); a("v_lshlrev_b32 v2, 7, v2")
    a("v_mov_b32 v3, s54"); a("v_mov_b32 v4, s52"); a("v_cndmask_b32 v3, v3, v4, vcc")
    a("v_mov_b32 v4, s55"); a("v_mov_b32 v5, s53"); a("v_cndmask_b32 v4, v4, v5, vcc")
    a(f"v_mov_b32 v5, {2*131072}"); a(f"v_mov_b32 v6, {2*49152}"); a(f"v_cndmask_b32 v{VPW}, v5, v6, vcc")
    a(f"v_add_co_u32 v{VPO}, vcc, v3, v2"); a(f"v_addc_co_u32 v{VPO+1}, vcc, 0, v4, vcc")
    q=[]
    per=(0 if NO_O else 6)+(0 if NO_W else 4)
    npf=0
    def pf_():
        nonlocal npf
        if PF and npf<16:
            prefetch(a,0); q.append('pf'); npf+=1
    for k in range(PFD-DEPTH): pf_()
    for s_ in range(DEPTH):
        issue(a,s_); q+=[s_]*per
        pf_()
    a("v_lshrrev_b32 v2, 2, v1")
    a("v_and_b32 v3, 3, v1")
    a("v_lshrrev_b32 v4, 3, v2"); a("v_lshlrev_b32 v4, 10, v4")
    a("v_and_b32 v5, 7, v2"); a("v_lshl_add_u32 v4, v5, 7, v4"); a("v_lshl_add_u32 v4, v3, 3, v4")
    a("v_add_u32 v4, s32, v4")
    a("v_lshrrev_b32 v5, 1, v2"); a("v_and_b32 v5, 3, v5")
    for nt in range(4):
        a(f"v_xor_b32 v6, {nt}, v5"); a(f"v_lshl_add_u32 v{VA+nt}, v6, 5, v4")
    if gen_k1.DBG:
        last=max(ix for ix,t in enumerate(q) if t==0)
        a(f"s_waitcnt vmcnt({len(q)-1-last})"); ts(a,1)
    for i in range(16):
        last=max(ix for ix,t in enumerate(q) if t==i)
        vm=len(q)-1-last
        q=q[last+1:]
        pf = 0 if (PF and npf<16) else None
        step(a,i%4,i+DEPTH<16,vm,i==0,i&1,pf)
        if pf is not None: q.append('pf'); npf+=1
        if i+DEPTH<16: q+=[i+DEPTH]*per
        if i==3: ts(a,2)
    a.flush()
    ts(a,3)
    T=VT
    a(f"v_and_b32 v{T}, 63, v{VT+10}")
    a(f"v_and_b32 v{T+1}, 15, v{T}"); a(f"v_lshrrev_b32 v{T+2}, 4, v{T}")
    a(f"v_mul_u32_u24 v{T+3}, 272, v{T+1}"); a(f"v_lshl_add_u32 v{T+3}, v{T+2}, 4, v{T+3}"); a(f"v_add_u32 v{T+3}, s32, v{T+3}")
    a(f"v_lshrrev_b32 v{T+4}, 3, v{VT+10}"); a(f"v_and_b32 v{T+5}, 7, v{VT+10}")
    a(f"v_mul_u32_u24 v{T+6}, 272, v{T+4}"); a(f"v_lshl_add_u32 v{T+6}, v{T+5}, 5, v{T+6}")
    a(f"v_add_u32 v{T+8}, 0x10000, v{T+6}")
    a(f"v_lshlrev_b32 v{T+7}, 11, v{T+4}"); a(f"v_lshl_add_u32 v{T+7}, v{T+5}, 4, v{T+7}")
    for rnd in range(2):
        if rnd==1: a("s_barrier")
        for q3 in range(3):
            for nt in range(4):
                d=acc(nt,rnd*3+q3)
                a(f"ds_write_b128 v{T+3}, v[{d}:{d+3}] offset:{q3*16*272+nt*64}")
        a("s_waitcnt lgkmcnt(0)")
        a("s_barrier")
        a("s_cmp_ge_u32 s28, 6"); a(f"s_cbranch_scc1 K2_SKIP{rnd}")
        R=OB
        for src in range(8):
            va = T+6 if src<4 else T+8
            off=(src%4)*16384
            a(f"ds_read_b128 v[{R+src*8}:{R+src*8+3}], v{va} offset:{off}")
            a(f"ds_read_b128 v[{R+src*8+4}:{R+src*8+7}], v{va} offset:{off+16}")
            if src==3: pass
        a("s_waitcnt lgkmcnt(8)")
        for e in range(8):
            a(f"v_add_f32 v{R+e}, v{R+e}, v{R+8+e}"); a(f"v_add_f32 v{R+16+e}, v{R+16+e}, v{R+24+e}")
        for e in range(8): a(f"v_add_f32 v{R+e}, v{R+e}, v{R+16+e}")
        a("s_waitcnt lgkmcnt(0)")
        for e in range(8):
            a(f"v_add_f32 v{R+32+e}, v{R+32+e}, v{R+40+e}"); a(f"v_add_f32 v{R+48+e}, v{R+48+e}, v{R+56+e}")
        for e in range(8): a(f"v_add_f32 v{R+32+e}, v{R+32+e}, v{R+48+e}")
        for e in range(8): a(f"v_add_f32 v{R+e}, v{R+e}, v{R+32+e}")
        O=R+64+rnd*4
        for e in range(4): a(f"v_cvt_pk_bf16_f32 v{O+e}, v{R+2*e}, v{R+2*e+1}")
        if rnd==0: so="0"
        else:
            a(f"s_mov_b32 s38, {48*2048}"); so="s38"
        a(f"buffer_store_dwordx4 v[{O}:{O+3}], v{T+7}, s[40:43], {so} offen")
        a.label(f"K2_SKIP{rnd}")
    if gen_k1.DBG:
        a("s_waitcnt vmcnt(0)"); ts(a,4)
        if CLK:
            a("s_memtime s[82:83]"); a("s_waitcnt lgkmcnt(0)"); a("s_sub_u32 s82, s82, s84")
        ts_dump(a,6,base=131072)
    a.label("K2_END")
    return a.text()
```

```python
from asmlib import *
import gen_k1
from gen_k1 import ts, ts_dump
ACC=0
OR=96
WF=192
VA=224
VO=240; VW=241; VW1=242; VOUT=243; VPS=244; VPA=248; VRA=245
SLOT=16384; NS=8; LDS2=131072; PBASE=0x2000000; PSZ=1536*2048
ROT=True; RB=2; RN=2; NOLD=False; NOMM=False; PBAR=True; SPL=([3,8],[1,5,9]); PF=False; PF2=True; PFOFF=0; PST=" sc0 sc1"; NT_O=""; NT_W=""; DEPTH=2; PSLOT=[1,3,5,7,9]
def acc(t,qt): return ACC+(t*3+qt)*4
def pieces(a,slot):
    L=[]
    def op(i):
        def f():
            so="s30"
            if i: a(f"s_add_u32 s38, s30, {i*4096}"); so="s38"
            r=OR+slot*12+i*4
            a(f"buffer_load_dwordx4 v[{r}:{r+3}], v{VO}, s[8:11], {so} offen{NT_O}")
        return f
    def wp(i):
        def f():
            a(f"s_add_u32 m0, s33, {slot*SLOT+i*1024}")
            so="s31"
            if i: a(f"s_add_u32 s38, s31, 4096"); so="s38"
            a(f"buffer_load_dwordx4 v{VW+i}, s[12:15], {so} offen{NT_W} lds")
        return f
    return [wp(0),wp(1),op(0),op(1),op(2)]
def adv(a,i):
    a(f"s_add_u32 s30, s30, {2048 if i%2==0 else 49152-2048}")
    a(f"s_add_u32 s31, s31, {64*1024}")
    if ROT and i%2==1:
        a("s_add_u32 s60, s60, 2"); a("s_cmp_eq_u32 s60, 16")
        a(f"s_cselect_b32 s61, {8*49152}, 0"); a("s_sub_u32 s30, s30, s61")
        a("s_cselect_b32 s61, 0x100000, 0") if False else None
        a("s_cmp_eq_u32 s60, 16"); a("s_cselect_b32 s61, 0x100000, 0"); a("s_sub_u32 s31, s31, s61")
def reads(a,slot,th):
    W=WF+th*16; hi=slot>>2; so=(slot&3)*SLOT
    for t in range(4):
        a(f"ds_read_b64_tr_b16 v[{W+t*4}:{W+t*4+1}], v{VA+8*hi+th*4+t} offset:{so}")
        a(f"ds_read_b64_tr_b16 v[{W+t*4+2}:{W+t*4+3}], v{VA+8*hi+th*4+t} offset:{so+4096}")
def mmas(a,slot,th,first,pcs=None,slots=()):
    O=OR+slot*12; W=WF+th*16; k=0
    for t in range(4):
        for qt in range(3):
            d=acc(th*4+t,qt); c="0" if first else f"v[{d}:{d+3}]"
            if not NOMM: a(f"v_mfma_f32_16x16x32_bf16 v[{d}:{d+3}], v[{W+t*4}:{W+t*4+3}], v[{O+qt*4}:{O+qt*4+3}], {c}")
            if pcs and k in slots: pcs.pop(0)()
            k+=1
def k2():
    a=Asm(); a.tag='k2'; a.uid=0
    a("s_cmp_ge_u32 s2, 256"); a("s_cbranch_scc1 K2_END")
    ts(a,0)
    a("s_load_dwordx2 s[24:25], s[0:1], 96")
    a("s_and_b32 s3, s2, 7"); a("s_lshr_b32 s4, s3, 2"); a("s_and_b32 s5, s3, 3"); a("s_lshr_b32 s6, s2, 3")
    a("s_and_b32 s7, s6, 7"); a("s_lshr_b32 s6, s6, 3")
    a("s_mul_i32 s16, s4, 40"); a("s_add_u32 s16, s0, s16"); a("s_addc_u32 s17, s1, 0")
    a("s_load_dwordx2 s[18:19], s[16:17], 32")
    a("s_load_dwordx4 s[20:23], s[0:1], 80")
    a("v_lshrrev_b32 v1, 6, v0"); a("v_readfirstlane_b32 s28, v1")
    a("v_and_b32 v1, 63, v0")
    a(f"v_lshlrev_b32 v{VO}, 4, v1")
    a("v_lshrrev_b32 v2, 4, v1"); a("v_and_b32 v3, 15, v1"); a("v_lshlrev_b32 v4, 1, v2"); a("v_xor_b32 v3, v3, v4")
    a("v_lshlrev_b32 v3, 4, v3"); a(f"v_lshl_add_u32 v{VW}, v2, 10, v3"); a(f"v_xor_b32 v{VW1}, 128, v{VW}")
    a("s_and_b32 s34, s28, 3"); a("s_lshr_b32 s35, s28, 2")
    a("s_lshl_b32 s33, s28, 11")
    a("s_mul_i32 s30, s34, 12288"); a("s_lshl_b32 s36, s35, 10"); a("s_add_u32 s30, s30, s36")
    a("s_lshl_b32 s31, s28, 13")
    if ROT:
        a(f"s_mul_i32 s60, s7, {RB}"); a(f"s_mul_i32 s61, s6, {RN}"); a("s_add_u32 s60, s60, s61"); a("s_and_b32 s60, s60, 14")
        a("s_lshl_b32 s61, s60, 16"); a("s_add_u32 s31, s31, s61")
        a("s_lshr_b32 s61, s60, 1"); a("s_mul_i32 s61, s61, 49152"); a("s_add_u32 s30, s30, s61")
    a("s_waitcnt lgkmcnt(0)")
    a("s_lshl_b32 s37, s4, 3"); a("s_add_u32 s37, s37, s7"); a("s_lshl_b32 s37, s37, 2"); a("s_add_u32 s37, s37, s5"); a(f"s_mul_i32 s36, s37, {8*49152}")
    a("s_add_u32 s8, s24, s36"); a("s_addc_u32 s9, s25, 0"); a(f"s_mov_b32 s10, {8*49152}"); a("s_mov_b32 s11, 0x20000")
    a("s_lshl_b32 s36, s5, 20"); a("s_lshl_b32 s37, s6, 8"); a("s_add_u32 s36, s36, s37")
    a("s_add_u32 s12, s18, s36"); a("s_addc_u32 s13, s19, 0"); a("s_sub_u32 s14, 0x100000, s37"); a("s_mov_b32 s15, 0x20000")
    qpre=[]
    if PF:
        a(f"s_add_u32 s48, s28, {PFOFF}")
        a("s_lshr_b32 s49, s48, 1"); a("s_mul_i32 s49, s49, 49152"); a("s_and_b32 s50, s48, 1"); a("s_lshl_b32 s50, s50, 11"); a("s_add_u32 s49, s49, s50")
        a("s_add_u32 s52, s8, s49"); a("s_addc_u32 s53, s9, 0")
        a("s_lshl_b32 s49, s48, 16"); a("s_add_u32 s54, s12, s49"); a("s_addc_u32 s55, s13, 0")
        a("s_mul_i32 s49, s6, 48"); a("v_add_u32 v2, s49, v1")
        a("v_lshrrev_b32 v3, 4, v2"); a("v_and_b32 v2, 15, v2"); a("v_lshlrev_b32 v2, 7, v2"); a("v_lshl_add_u32 v2, v3, 12, v2")
        a("s_lshl_b32 s49, s7, 4"); a("v_subrev_u32 v3, 48, v1"); a("v_and_b32 v3, 15, v3"); a("v_add_u32 v3, s49, v3")
        a("v_lshrrev_b32 v4, 1, v3"); a("v_and_b32 v3, 1, v3"); a("v_lshlrev_b32 v3, 7, v3"); a("v_lshl_add_u32 v3, v4, 10, v3")
        a("v_cmp_gt_u32 vcc, 48, v1")
        a("v_cndmask_b32 v2, v3, v2, vcc")
        a("v_mov_b32 v3, s54"); a("v_mov_b32 v4, s52"); a("v_cndmask_b32 v3, v3, v4, vcc")
        a("v_mov_b32 v4, s55"); a("v_mov_b32 v5, s53"); a("v_cndmask_b32 v4, v4, v5, vcc")
        a(f"v_mov_b32 v5, {8*65536}"); a(f"v_mov_b32 v6, {4*49152}"); a(f"v_cndmask_b32 v{VPS}, v5, v6, vcc")
        a(f"v_add_co_u32 v{VPA}, vcc, v3, v2"); a(f"v_addc_co_u32 v{VPA+1}, vcc, 0, v4, vcc")
        pass
        a(f"global_load_dword v{VPA+2}, v[{VPA}:{VPA+1}], off"); qpre.append('pf')
    ts(a,5)
    for s_ in range(DEPTH):
        for f in pieces(a,s_): f()
        adv(a,s_)
        if PBAR: a("s_barrier")
    q=qpre
    for s_ in range(DEPTH): q+=[s_]*5
    if PF and PF2:
        a(f"v_add_co_u32 v{VPA}, vcc, v{VPA}, v{VPS}"); a(f"v_addc_co_u32 v{VPA+1}, vcc, 0, v{VPA+1}, vcc")
        a(f"global_load_dword v{VPA+3}, v[{VPA}:{VPA+1}], off"); q.append('pf')
    ts(a,6)
    a(f"s_mul_i32 s36, s5, {PSZ}"); a(f"s_mul_i32 s37, s7, {192*2048}"); a("s_add_u32 s36, s36, s37")
    a("s_lshl_b32 s37, s4, 10"); a("s_add_u32 s36, s36, s37"); a("s_lshl_b32 s37, s6, 8"); a("s_add_u32 s36, s36, s37"); a(f"s_add_u32 s36, s36, {PBASE}")
    a("s_add_u32 s40, s24, s36"); a("s_addc_u32 s41, s25, 0"); a(f"s_mov_b32 s42, {192*2048}"); a("s_mov_b32 s43, 0x20000")
    a("v_lshrrev_b32 v2, 2, v1"); a("v_and_b32 v3, 3, v1"); a("v_lshlrev_b32 v3, 3, v3")
    a("v_lshl_add_u32 v3, v2, 8, v3"); a("s_lshl_b32 s36, s35, 13"); a("v_add_u32 v3, s36, v3")
    a("v_and_b32 v5, 7, v2")
    for t in range(8):
        a(f"v_xor_b32 v6, {t}, v5"); a(f"v_lshl_add_u32 v{VA+t}, v6, 5, v3"); a(f"v_add_u32 v{VA+8+t}, {4*SLOT}, v{VA+t}")
    a("v_and_b32 v2, 15, v1"); a("v_lshrrev_b32 v3, 4, v1"); a("s_mul_i32 s36, s34, 48"); a("v_add_u32 v2, s36, v2")
    a("v_lshlrev_b32 v2, 11, v2"); a("v_lshl_add_u32 v2, v3, 4, v2"); a("s_lshl_b32 s36, s35, 7"); a(f"v_add_u32 v{VOUT}, s36, v2")
    a("s_mul_i32 s36, s28, 12288"); a(f"v_add_u32 v{VRA}, s36, v{VO}")
    a("s_xor_b32 s37, s28, 4"); a("s_mul_i32 s36, s37, 12288"); a(f"v_add_u32 v{VRA+1}, s36, v{VO}")
    nxt=DEPTH
    if K2PRIO:
        a('s_cmp_eq_u32 s35, %d' % K2PRIO[0]); a.lines.append('s_cbranch_scc0 K2_NOPRIO'); a.lines.append('s_setprio 1'); a.lines.append('K2_NOPRIO:')
    for i in range(16):
        last=max(ix for ix,t in enumerate(q) if t==i); vm=len(q)-1-last; q=q[last+1:]
        if NOLD: vm=0
        a(f"s_waitcnt vmcnt({vm}) lgkmcnt(0)")
        a("s_barrier")
        if i==0: ts(a,1)
        if i==4: ts(a,2)
        reads(a,i%NS,0)
        sts=[]
        tgt=min(15,i+DEPTH+RAMP[min(i,len(RAMP)-1)])
        while nxt<=tgt: sts.append(nxt); nxt+=1
        pcs=[]
        for st in sts:
            P=pieces(a,st%NS); lastp=P[-1]
            P[-1]=(lambda lp,st_: (lambda: (lp(),adv(a,st_))))(lastp,st)
            pcs+=P; q+=[st]*5
        sl=SPL if len(sts)<2 else SPL2
        if i>0: mmas(a,(i-1)%NS,1,i==1,pcs,sl[0])
        a("s_waitcnt lgkmcnt(0)")
        reads(a,i%NS,1)
        mmas(a,i%NS,0,i==0,pcs,sl[1])
        for f in pcs: f()
    a("s_waitcnt lgkmcnt(0)")
    mmas(a,15%NS,1,False)
    a.flush()
    ts(a,3)
    a("s_cmp_eq_u32 s35, 0"); a("s_cbranch_scc0 K2_KH1")
    for kh in range(2):
        if kh==1: a.label("K2_KH1")
        oth=1-kh; R=OR
        for u in range(12):
            d=acc(oth*4,0)+u*4
            a(f"ds_write_b128 v{VRA}, v[{d}:{d+3}] offset:{u*1024}")
        a("s_waitcnt lgkmcnt(0)"); a("s_barrier")
        for u in range(12):
            a(f"ds_read_b128 v[{R+u*4}:{R+u*4+3}], v{VRA+1} offset:{u*1024}")
        X=WF
        for qt in range(3):
            for t in range(4):
                u=t*3+qt; d=acc(kh*4+t,qt); r=X+qt*8+t*2
                if qt==0: a(f"s_waitcnt lgkmcnt({11-u if t<3 else 2})") if False else None
                if qt==0 and t==0: a("s_waitcnt lgkmcnt(0)")
                a(f"v_pk_add_f32 v[{d}:{d+1}], v[{d}:{d+1}], v[{R+u*4}:{R+u*4+1}]"); a(f"v_pk_add_f32 v[{d+2}:{d+3}], v[{d+2}:{d+3}], v[{R+u*4+2}:{R+u*4+3}]")
                a(f"v_cvt_pk_bf16_f32 v{r}, v{d}, v{d+1}"); a(f"v_cvt_pk_bf16_f32 v{r+1}, v{d+2}, v{d+3}")
            r=X+qt*8
            for p in range(2):
                for e in range(2): a(f"v_permlane32_swap_b32 v{r+p*4+e}, v{r+p*4+2+e}")
            for p in range(2):
                for e in range(2): a(f"v_permlane16_swap_b32 v{r+p*4+e}, v{r+p*4+2+e}")
            a(f"s_mov_b32 s38, {qt*16*2048}")
            for p in range(2):
                a(f"buffer_store_dwordx4 v[{r+p*4}:{r+p*4+3}], v{VOUT}, s[40:43], s38 offen offset:{p*64}{PST}")
        if kh==0: a.flush(); a.lines.append("s_branch K2_FIN")
    a.label("K2_FIN")
    if gen_k1.DBG:
        a("s_waitcnt vmcnt(0)"); ts(a,4)
        ts_dump(a,7,base=131072)
    a.label("K2_END")
    return a.text()
def KEY(a):
    a("v_and_b32 v5, 7, v2"); a("v_lshlrev_b32 v5, 1, v5")
K2PRIO=None; RAMP=[0]; SPL2=([1,3,5,7,9,11],[1,3,5,7]); NWG3=768; BLK3=256; K3LD=''; K3ST=''
def k3():
    a=Asm(); a.tag='k3'; a.uid=0
    a(f"s_cmp_ge_u32 s2, {NWG3}"); a("s_cbranch_scc1 K3_END")
    a("s_load_dwordx2 s[20:21], s[0:1], 80"); a("s_load_dwordx2 s[24:25], s[0:1], 96")
    a(f"s_mul_i32 s3, s2, {BLK3*16}"); a("v_lshlrev_b32 v1, 4, v0"); a("v_add_u32 v1, s3, v1")
    a("s_waitcnt lgkmcnt(0)")
    a(f"s_add_u32 s8, s24, {PBASE}"); a("s_addc_u32 s9, s25, 0"); a(f"s_mov_b32 s10, {4*PSZ}"); a("s_mov_b32 s11, 0x20000")
    a("s_mov_b32 s12, s20"); a("s_mov_b32 s13, s21"); a(f"s_mov_b32 s14, {PSZ}"); a("s_mov_b32 s15, 0x20000")
    for i in range(4):
        a(f"s_mov_b32 s{30+i}, {i*PSZ}")
        a(f"buffer_load_dwordx4 v[{4+4*i}:{7+4*i}], v1, s[8:11], s{30+i} offen{K3LD}")
    for i in range(4):
        a(f"s_waitcnt vmcnt({3-i})")
        for e in range(4):
            r=4+4*i+e
            if i==0:
                a(f"v_lshlrev_b32 v{24+2*e}, 16, v{r}"); a(f"v_and_b32 v{25+2*e}, 0xffff0000, v{r}")
            else:
                a(f"v_lshlrev_b32 v{20}, 16, v{r}"); a(f"v_and_b32 v{21}, 0xffff0000, v{r}")
                a(f"v_add_f32 v{24+2*e}, v{24+2*e}, v20"); a(f"v_add_f32 v{25+2*e}, v{25+2*e}, v21")
    for e in range(4): a(f"v_cvt_pk_bf16_f32 v{32+e}, v{24+2*e}, v{25+2*e}")
    a(f"buffer_store_dwordx4 v[32:35], v1, s[12:15], 0 offen{K3ST}")
    a.label("K3_END")
    return a.text()
```

```python
import sys, importlib
import gen_k1, gen_k2, gen_k2b
NEW=True
from asmlib import *
NAME = "concat_heads__mha_block_cached__mha_block_cached__near_ridge"
REP2 = 1
def build(out, k1=gen_k1, k2=gen_k2):
    if NEW: k2=gen_k2b
    hdr = f"; @launch kernel={NAME}_kernel grid=(256,1,1) block=(512,1,1) lds={k1.LDS_BYTES}\n" + REP2 * f"; @launch kernel=oproj_kernel grid=(256,1,1) block=(512,1,1) lds={k2.LDS2}\n"
    src = hdr + '.amdgcn_target "amdgcn-amd-amdhsa--gfx950"\n' + kernel(NAME + "_kernel", k1.k1(), vgpr=256, sgpr=96) + kernel("oproj_kernel", k2.k2(), vgpr=256, sgpr=96)
    if NEW:
        hdr2 = f"; @launch kernel=reduce_kernel grid=({k2.NWG3},1,1) block=({k2.BLK3},1,1) lds=0\n"
        src = hdr + hdr2 + src[len(hdr):] + kernel('reduce_kernel', k2.k3(), vgpr=64, sgpr=96)
    open(out, "w").write(src)
if __name__ == "__main__":
    if "--dbg" in sys.argv: gen_k1.DBG = True
    if "--old" in sys.argv: NEW=False
    if "--rep2" in sys.argv: REP2 = 2
    for arg in sys.argv[2:]:
        if "=" in arg:
            k, v = arg.split("=", 1); m, k = k.split(".")
            setattr({"k1": gen_k1, "k2": gen_k2, "k2b": gen_k2b}[m], k, eval(v))
    build(sys.argv[1] if len(sys.argv) > 1 else "full.s")
```
